```python
import torch

def _softmax(x, axis=-1):
    return torch.softmax(x, dim=axis)

def _gelu(x):
    return torch.nn.functional.gelu(x, approximate='tanh')

def _silu(x):
    return torch.nn.functional.silu(x)

def _sigmoid(x):
    return torch.sigmoid(x)

def _layernorm(x, axis=-1, eps=1e-05):
    m = x.mean(dim=axis, keepdim=True)
    v = x.var(dim=axis, keepdim=True, unbiased=False)
    return (x - m) / torch.sqrt(v + eps)

def _scatter_add(tgt, idx, src, axis=0):
    return tgt.clone().index_add_(axis, idx, src)

def _segment_sum(src, seg, n):
    out = torch.zeros((n,) + src.shape[1:], dtype=src.dtype)
    return out.index_add_(0, seg, src)

def _pad(x, pw):
    flat = tuple((v for pair in reversed(pw) for v in pair))
    return torch.nn.functional.pad(x, flat)
kernel_name = 'standalone__autoregressive_conv_wavenet__speech'

def setup_inputs():

    _w = lambda a: (lambda t: t.to(torch.bfloat16) if t.is_floating_point() else t)(torch.as_tensor(a))
    B, T, D, K = (2, 1000, 512, 31)
    return {'x': _w((lambda *s: torch.randn(*s, dtype=torch.bfloat16) * 0.05)(B, T, D)), 'w': _w((lambda *s: torch.randn(*s, dtype=torch.bfloat16) * 0.05)(K, D, 2 * D)), 'w_o': _w((lambda *s: torch.randn(*s, dtype=torch.bfloat16) * 0.05)(D, D))}

def reference(x, w, w_o):
    B, T, D = x.shape
    K = w.shape[0]
    dil = 2
    pad = (K - 1) * dil
    xp = _pad(x, ((0, 0), (pad, 0), (0, 0)))
    h = torch.einsum('btc,cd->btd', xp[:, pad:pad + T, :], w[0])
    for i in range(1, K):
        off = pad - i * dil
        h = h + torch.einsum('btc,cd->btd', xp[:, off:off + T, :], w[i])
    f = h[..., :D].clone()
    g = h[..., D:].clone()
    z = torch.tanh(f) * _sigmoid(g)
    return z @ w_o
```

```python
STAMP_OFF = 240 << 20

class Asm:
    def __init__(self):
        self.lines = []
    def __call__(self, s):
        for l in s.strip('\n').split('\n'):
            self.lines.append('    ' + l.strip() if not l.strip().endswith(':') else l.strip())
    def raw(self, s):
        self.lines.append(s)
    def text(self):
        return '\n'.join(self.lines) + '\n'

def kd(name, vgpr, accum, sgpr=102):
    return f'''.section .rodata,"a"
.p2align 6
.amdhsa_kernel {name}
  .amdhsa_next_free_vgpr {vgpr}
  .amdhsa_next_free_sgpr {sgpr}
  .amdhsa_accum_offset {accum}
  .amdhsa_group_segment_fixed_size 0
  .amdhsa_kernarg_size 48
  .amdhsa_user_sgpr_count 2
  .amdhsa_user_sgpr_kernarg_segment_ptr 1
  .amdhsa_system_sgpr_workgroup_id_x 1
.end_amdhsa_kernel
.text
'''

def head(name):
    return f'''.globl {name}
.p2align 8
.type {name},@function
{name}:
'''

def stamp_begin(a):
    a('s_memrealtime s[92:93]\ns_memtime s[94:95]')

def stamp_end(a, kidx, ws_lo, v0=0):
    a(f'''
    s_waitcnt vmcnt(0) lgkmcnt(0)
    s_memrealtime s[96:97]
    s_memtime s[98:99]
    s_mov_b32 s88, s{ws_lo}
    s_mov_b32 s89, s{ws_lo+1}
    s_mov_b32 s90, 268435456
    s_mov_b32 s91, 0x20000
    s_lshl_b32 s87, s2, 5
    s_add_u32 s87, s87, {STAMP_OFF + kidx*65536}
    s_waitcnt lgkmcnt(0)
    v_mov_b32 v4, s92
    v_mov_b32 v5, s93
    v_mov_b32 v6, s96
    v_mov_b32 v7, s97
    v_mov_b32 v8, s94
    v_mov_b32 v9, s95
    v_mov_b32 v10, s98
    v_mov_b32 v11, s99
    v_mov_b32 v12, 0x7fffffff
    v_cmp_eq_u32 vcc, 0, v{v0}
    s_nop 1
    v_cndmask_b32 v12, v12, 0, vcc
    buffer_store_dwordx4 v[4:7], v12, s[88:91], s87 offen
    buffer_store_dwordx4 v[8:11], v12, s[88:91], s87 offen offset:16
    s_waitcnt vmcnt(0)
    ''')
```

```python
from asmlib import *

def gemm(a, name, conv, stamps=None):
    a.raw(head(name))
    ntile = 512 if conv else 256
    a(f's_cmp_ge_u32 s2, {ntile}\ns_cbranch_scc1 Lend_{name}')
    if stamps is not None:
        stamp_begin(a)
    a('''
    s_load_dwordx4 s[4:7], s[0:1], 0
    s_load_dwordx4 s[24:27], s[0:1], 16
    s_load_dwordx2 s[28:29], s[0:1], 40
    ''')
    if conv:
        a('s_and_b32 s20, s2, 15\ns_lshr_b32 s21, s2, 4')
    else:
        a('s_and_b32 s20, s2, 7\ns_lshr_b32 s21, s2, 3')
    a('''
    s_lshr_b32 s22, s21, 4
    s_and_b32 s21, s21, 15
    s_mul_i32 s23, s22, 1024000
    s_waitcnt lgkmcnt(0)
    ''')
    src = (4, 5) if conv else (28, 29)
    wsrc = (6, 7) if conv else (24, 25)
    dst = (28, 29) if conv else (26, 27)
    wrow = 2048 if conv else 1024
    sec = 1024 if conv else 64
    a(f'''
    s_add_u32 s8, s{src[0]}, s23
    s_addc_u32 s9, s{src[1]}, 0
    s_mov_b32 s10, 1024000
    s_mov_b32 s11, 0x20000
    s_mov_b32 s12, s{wsrc[0]}
    s_mov_b32 s13, s{wsrc[1]}
    s_mov_b32 s14, {32505856 if conv else 524288}
    s_mov_b32 s15, 0x20000
    s_add_u32 s16, s{dst[0]}, s23
    s_addc_u32 s17, s{dst[1]}, 0
    s_mov_b32 s18, 1024000
    s_mov_b32 s19, 0x20000
    v_and_b32 v1, 31, v0
    v_lshrrev_b32 v2, 5, v0
    s_lshl_b32 s30, s21, 6
    v_add_u32 v3, s30, v1
    v_lshlrev_b32 v16, 10, v3
    v_lshl_add_u32 v16, v2, 4, v16
    v_add_u32 v17, 32768, v16
    v_lshrrev_b32 v18, 2, v0
    v_mul_u32_u24 v18, {wrow}, v18
    v_and_b32 v13, 3, v0
    v_lshl_add_u32 v18, v13, 4, v18
    s_lshl_b32 s31, s20, {6 if conv else 7}
    v_add_u32 v18, s31, v18
    v_lshrrev_b32 v13, 4, v0
    v_lshrrev_b32 v14, 1, v13
    v_and_b32 v13, 1, v13
    v_bfe_u32 v15, v0, 2, 2
    v_lshl_add_u32 v14, v14, 3, v15
    v_lshlrev_b32 v19, 6, v14
    v_lshl_add_u32 v19, v13, 5, v19
    v_and_b32 v15, 3, v0
    v_lshl_add_u32 v19, v15, 3, v19
    s_mov_b32 s33, 0
    s_mov_b32 s41, 256
    s_mov_b32 s34, 0
    ''')
    for i in range(64):
        a(f'v_accvgpr_write_b32 a{i}, 0')
    niter = 124 if conv else 4

    def issue(buf):
        for ks in range(8):
            for half in range(2):
                a(f's_mov_b32 m0, {buf*16384 + (ks*2+half)*1024}')
                a(f's_add_u32 s35, s33, {ks*16*wrow + half*sec}')
                a('buffer_load_dwordx4 v18, s[12:15], s35 offen lds')
            r = 32 + buf*64 + ks*8
            a(f'buffer_load_dwordx4 v[{r}:{r+3}], v16, s[8:11], 0 offen offset:{ks*32}')
            a(f'buffer_load_dwordx4 v[{r+4}:{r+7}], v17, s[8:11], 0 offen offset:{ks*32}')
        a(f'''
        s_add_u32 s33, s33, {128*wrow}
        s_add_u32 s34, s34, 1
        s_and_b32 s36, s34, 3
        s_cmp_eq_u32 s36, 0
        s_cselect_b32 s36, {-2048-768}, s41
        v_add_u32 v16, s36, v16
        v_add_u32 v17, s36, v17
        ''')

    def compute(buf):
        for ks in range(8):
            for half in range(2):
                o = buf*16384 + (ks*2+half)*1024
                a(f'ds_read_b64_tr_b16 v[{20+half*4}:{21+half*4}], v19 offset:{o}')
                a(f'ds_read_b64_tr_b16 v[{22+half*4}:{23+half*4}], v19 offset:{o+256}')
            a('s_waitcnt lgkmcnt(0)')
            r = 32 + buf*64 + ks*8
            for half in range(2):
                for rt in range(2):
                    acc = (half*2+rt)*16
                    a(f'v_mfma_f32_32x32x16_bf16 a[{acc}:{acc+15}], v[{r+rt*4}:{r+rt*4+3}], v[{20+half*4}:{23+half*4}], a[{acc}:{acc+15}]')

    issue(0)
    a('s_mov_b32 s37, 0')
    a(f'Lloop_{name}:')
    issue(1)
    a('s_waitcnt vmcnt(32)')
    compute(0)
    issue(0)
    a('s_waitcnt vmcnt(32)')
    compute(1)
    a(f's_add_u32 s37, s37, 2\ns_cmp_lt_u32 s37, {niter}\ns_cbranch_scc1 Lloop_{name}')
    a('s_waitcnt vmcnt(0)\ns_nop 15')
    a(f'''
    v_lshlrev_b32 v3, 2, v2
    v_add_u32 v3, s30, v3
    v_lshlrev_b32 v3, 10, v3
    v_lshl_add_u32 v3, v1, 1, v3
    v_add_u32 v3, s31, v3
    s_mov_b32 s38, 0xc038aa3b
    s_mov_b32 s39, 0xbfb8aa3b
    v_mov_b32 v26, 0x41f00000
    ''')
    for rt in range(2):
        for r in range(16):
            row = rt*32 + 8*(r//4) + (r % 4)
            a(f's_mov_b32 s35, {row*1024}')
            a(f'v_accvgpr_read_b32 v20, a{rt*16+r}\nv_accvgpr_read_b32 v21, a{32+rt*16+r}')
            if conv:
                a('''
                v_med3_f32 v20, v20, -v26, v26
                v_mul_f32 v20, s38, v20
                v_mul_f32 v21, s39, v21
                v_exp_f32 v20, v20
                v_exp_f32 v21, v21
                s_nop 0
                v_sub_f32 v22, 1.0, v20
                v_add_f32 v20, 1.0, v20
                v_add_f32 v21, 1.0, v21
                v_mul_f32 v20, v20, v21
                v_rcp_f32 v20, v20
                s_nop 0
                v_mul_f32 v20, v20, v22
                v_cvt_pk_bf16_f32 v20, v20, v20
                buffer_store_short v20, v3, s[16:19], s35 offen
                ''')
            else:
                a('''
                v_cvt_pk_bf16_f32 v20, v20, v20
                v_cvt_pk_bf16_f32 v21, v21, v21
                buffer_store_short v20, v3, s[16:19], s35 offen
                buffer_store_short v21, v3, s[16:19], s35 offen offset:64
                ''')
            a('s_nop 1')
    if stamps is not None:
        stamp_end(a, stamps, 28)
    a(f'Lend_{name}:\ns_endpgm')
    a.raw(kd(name, 224, 160))

def build(pre=None, stamps=False):
    a = Asm()
    pre = pre or []
    for nm, grid, blk, lds, _ in pre:
        a.raw(f'; @launch kernel={nm} grid=({grid},1,1) block=({blk},1,1) lds={lds}')
    a.raw('; @launch kernel=conv_kernel grid=(512,1,1) block=(64,1,1) lds=32768')
    a.raw('; @launch kernel=proj_kernel grid=(256,1,1) block=(64,1,1) lds=32768')
    a.raw('.amdgcn_target "amdgcn-amd-amdhsa--gfx950"\n.text')
    done = set()
    for nm, _, _, _, fn in pre:
        if nm not in done:
            fn(a, nm); done.add(nm)
    gemm(a, 'conv_kernel', True, len(pre) if stamps else None)
    gemm(a, 'proj_kernel', False, len(pre) + 1 if stamps else None)
    return a.text()

if __name__ == '__main__':
    open('direct.s', 'w').write(build())
    open('direct_st.s', 'w').write(build(stamps=True))
```

```python
from asmlib import *
from gen_direct import build

AMP = 20
def amp_begin(a):
    a('s_memrealtime s[60:61]')
def amp_end(a, nm):
    a(f'''
    s_waitcnt vmcnt(0) lgkmcnt(0)
    s_memrealtime s[62:63]
    s_waitcnt lgkmcnt(0)
    s_sub_u32 s64, s62, s60
    s_min_u32 s64, s64, 5000
    s_mul_i32 s64, s64, {AMP}
    Lspin_{nm}:
    s_memrealtime s[66:67]
    s_waitcnt lgkmcnt(0)
    s_sub_u32 s65, s66, s62
    s_cmp_lt_u32 s65, s64
    s_cbranch_scc1 Lspin_{nm}
    ''')

def empty(a, nm):
    a.raw(head(nm)); a('s_endpgm'); a.raw(kd(nm, 8, 8))

def mk_stream(flags, slot=8, nbytes=32505856, n=31, step=1 << 20, amp=True):
    def fn(a, nm):
        a.raw(head(nm))
        a(f's_cmp_ge_u32 s2, 256\ns_cbranch_scc1 Lend_{nm}')
        amp_begin(a)
        a(f'''
        s_load_dwordx2 s[4:5], s[0:1], {slot}
        v_lshlrev_b32 v3, 4, v0
        s_waitcnt lgkmcnt(0)
        s_mov_b32 s8, s4
        s_mov_b32 s9, s5
        s_mov_b32 s10, {nbytes}
        s_mov_b32 s11, 0x20000
        s_lshl_b32 s30, s2, 12
        ''')
        for i in range(n):
            a(f's_add_u32 s35, s30, {i*step}')
            a(f'buffer_load_dwordx4 v[{32+4*i}:{35+4*i}], v3, s[8:11], s35 offen {flags}')
        if amp:
            amp_end(a, nm)
        a(f's_waitcnt vmcnt(0)\nLend_{nm}:\ns_endpgm'); a.raw(kd(nm, 256, 256))
    return fn

def mk_write(flags, n=24, amp=True):
    def fn(a, nm):
        a.raw(head(nm))
        a(f's_cmp_ge_u32 s2, 256\ns_cbranch_scc1 Lend_{nm}')
        amp_begin(a)
        a(f'''
        s_load_dwordx2 s[4:5], s[0:1], 40
        v_lshlrev_b32 v3, 4, v0
        v_mov_b32 v4, 1.0
        v_mov_b32 v5, v0
        v_mov_b32 v6, 2.0
        v_mov_b32 v7, v0
        s_waitcnt lgkmcnt(0)
        s_mov_b32 s8, s4
        s_mov_b32 s9, s5
        s_mov_b32 s10, 268435456
        s_mov_b32 s11, 0x20000
        s_lshl_b32 s30, s2, 12
        ''')
        for i in range(n):
            a(f's_add_u32 s35, s30, {(16 + i) << 20}')
            a(f'buffer_store_dwordx4 v[4:7], v3, s[8:11], s35 offen {flags}')
        if amp:
            amp_end(a, nm)
        a(f's_waitcnt vmcnt(0)\nLend_{nm}:\ns_endpgm'); a.raw(kd(nm, 256, 256))
    return fn

V = {
    'pb_base': [],
    'pb_empty20': [('e_kernel', 256, 256, 0, empty)] * 20,
    'pb_rd': [('p_kernel', 256, 256, 0, mk_stream(''))],
    'pb_rdnt': [('p_kernel', 256, 256, 0, mk_stream('nt'))],
    'pb_wr': [('p_kernel', 256, 256, 0, mk_write(''))],
    'pb_wrnt': [('p_kernel', 256, 256, 0, mk_write('nt'))],
    'pb_rdx': [('p_kernel', 256, 256, 0, mk_stream('', slot=0, nbytes=2048000, n=2))],
    'pb_rdxnt': [('p_kernel', 256, 256, 0, mk_stream('nt', slot=0, nbytes=2048000, n=2))],
    'pb_wrsc1': [('p_kernel', 256, 256, 0, mk_write('sc0 sc1'))],
}
for n, pre in V.items():
    open(n + '.s', 'w').write(build(pre))
```

```python
from asmlib import *
from gen_direct import build

AMP = 20
def amp_begin(a):
    a('s_memrealtime s[60:61]')
def amp_end(a, nm):
    a(f'''
    s_waitcnt vmcnt(0) lgkmcnt(0)
    s_memrealtime s[62:63]
    s_waitcnt lgkmcnt(0)
    s_sub_u32 s64, s62, s60
    s_min_u32 s64, s64, 5000
    s_mul_i32 s64, s64, {AMP}
    Lspin_{nm}:
    s_memrealtime s[66:67]
    s_waitcnt lgkmcnt(0)
    s_sub_u32 s65, s66, s62
    s_cmp_lt_u32 s65, s64
    s_cbranch_scc1 Lspin_{nm}
    ''')

def empty(a, nm):
    a.raw(head(nm)); a('s_endpgm'); a.raw(kd(nm, 8, 8))

def mk_stream(flags, slot=8, nbytes=32505856, n=31, step=1 << 20, amp=True, base=0, rot=0):
    def fn(a, nm):
        a.raw(head(nm))
        a(f's_cmp_ge_u32 s2, 256\ns_cbranch_scc1 Lend_{nm}')
        amp_begin(a)
        a(f'''
        s_load_dwordx2 s[4:5], s[0:1], {slot}
        v_lshlrev_b32 v3, 4, v0
        s_waitcnt lgkmcnt(0)
        s_mov_b32 s8, s4
        s_mov_b32 s9, s5
        s_mov_b32 s10, {nbytes}
        s_mov_b32 s11, 0x20000
        s_add_u32 s30, s2, {rot}
        s_and_b32 s30, s30, 255
        s_lshl_b32 s30, s30, 12
        ''')
        for i in range(n):
            a(f's_add_u32 s35, s30, {base + i*step}')
            a(f'buffer_load_dwordx4 v[{32+4*i}:{35+4*i}], v3, s[8:11], s35 offen {flags}')
        if amp:
            amp_end(a, nm)
        a(f's_waitcnt vmcnt(0)\nLend_{nm}:\ns_endpgm'); a.raw(kd(nm, 256, 256))
    return fn

def mk_write(flags, n=24, amp=True):
    def fn(a, nm):
        a.raw(head(nm))
        a(f's_cmp_ge_u32 s2, 256\ns_cbranch_scc1 Lend_{nm}')
        amp_begin(a)
        a(f'''
        s_load_dwordx2 s[4:5], s[0:1], 40
        v_lshlrev_b32 v3, 4, v0
        v_mov_b32 v4, 1.0
        v_mov_b32 v5, v0
        v_mov_b32 v6, 2.0
        v_mov_b32 v7, v0
        s_waitcnt lgkmcnt(0)
        s_mov_b32 s8, s4
        s_mov_b32 s9, s5
        s_mov_b32 s10, 268435456
        s_mov_b32 s11, 0x20000
        s_lshl_b32 s30, s2, 12
        ''')
        for i in range(n):
            a(f's_add_u32 s35, s30, {(16 + i) << 20}')
            a(f'buffer_store_dwordx4 v[4:7], v3, s[8:11], s35 offen {flags}')
        if amp:
            amp_end(a, nm)
        a(f's_waitcnt vmcnt(0)\nLend_{nm}:\ns_endpgm'); a.raw(kd(nm, 256, 256))
    return fn

V = {
    'pb_base': [],
    'pb_empty20': [('e_kernel', 256, 256, 0, empty)] * 20,
    'pb_rd': [('p_kernel', 256, 256, 0, mk_stream(''))],
    'pb_rdnt': [('p_kernel', 256, 256, 0, mk_stream('nt'))],
    'pb_wr': [('p_kernel', 256, 256, 0, mk_write(''))],
    'pb_wrnt': [('p_kernel', 256, 256, 0, mk_write('nt'))],
    'pb_rdx': [('p_kernel', 256, 256, 0, mk_stream('', slot=0, nbytes=2048000, n=2))],
    'pb_rdxnt': [('p_kernel', 256, 256, 0, mk_stream('nt', slot=0, nbytes=2048000, n=2))],
    'pb_wrsc1': [('p_kernel', 256, 256, 0, mk_write('sc0 sc1'))],
    'pb_rd_na': [('p_kernel', 256, 256, 0, mk_stream('', amp=False))],
    'pb_wr8_na': [('p_kernel', 256, 256, 0, mk_write('', amp=False))] * 8,
    'pb_wr_rdsame': [('p_kernel', 256, 256, 0, mk_write('', amp=False)), ('q_kernel', 256, 256, 0, mk_stream('', slot=40, nbytes=268435456, n=24, base=16 << 20))],
    'pb_wr_rdother': [('p_kernel', 256, 256, 0, mk_write('', amp=False)), ('q_kernel', 256, 256, 0, mk_stream('', slot=40, nbytes=268435456, n=24, base=16 << 20, rot=3))],
    'pb_rdnt_rd': [('p_kernel', 256, 256, 0, mk_stream('nt', amp=False, n=24)), ('q_kernel', 256, 256, 0, mk_stream('nt', n=24))],
}
for n, pre in V.items():
    open(n + '.s', 'w').write(build(pre))
```
